```python
import torch

def _softmax(x, axis=-1):
    return torch.softmax(x, dim=axis)
def _gelu(x):
    return torch.nn.functional.gelu(x, approximate="tanh")
def _silu(x):
    return torch.nn.functional.silu(x)
def _sigmoid(x):
    return torch.sigmoid(x)
def _layernorm(x, axis=-1, eps=1e-5):
    m = x.mean(dim=axis, keepdim=True)
    v = x.var(dim=axis, keepdim=True, unbiased=False)
    return (x - m) / torch.sqrt(v + eps)
def _scatter_add(tgt, idx, src, axis=0):
    return tgt.clone().index_add_(axis, idx, src)
def _segment_sum(src, seg, n):
    out = torch.zeros((n,) + src.shape[1:], dtype=src.dtype)
    return out.index_add_(0, seg, src)
def _pad(x, pw):
    flat = tuple(v for pair in reversed(pw) for v in pair)
    return torch.nn.functional.pad(x, flat)

kernel_name = 'standalone__grn__sampling'

def setup_inputs():

    _w = (lambda a: (lambda t: t.to(torch.bfloat16) if t.is_floating_point() else t)(torch.as_tensor(a)))
    B, S, D = 1024, 16, 1024
    return {
        "x": _w((lambda *s: torch.randn(*s, dtype=torch.bfloat16) * 0.05)(B, S, D)),
        "g": _w((lambda *s: torch.randn(*s, dtype=torch.bfloat16) * 0.4)(D) * 0.1),
        "b": _w((lambda *s: torch.randn(*s, dtype=torch.bfloat16) * 0.1)(D) * 0.1),
    }

def reference(x, g, b):
    gx = torch.sqrt((x * x).sum(axis=-2, keepdims=True))
    nx = gx / (gx.mean(axis=-1, keepdims=True) + 1e-6)
    return g * (x * nx) + b + x
```

```python
import sys, argparse

HEADER = """; Kernarg layout for this problem (48 bytes, ptrs only, base s[0:1]):
"""

def footer(name, vgpr, sgpr):
    acc = (vgpr + 3) // 4 * 4
    return f"""
.section .rodata,"a"
.p2align 6
.amdhsa_kernel {name}
  .amdhsa_next_free_vgpr {vgpr}
  .amdhsa_next_free_sgpr {sgpr}
  .amdhsa_accum_offset {acc}
  .amdhsa_group_segment_fixed_size 0
  .amdhsa_kernarg_size 48
  .amdhsa_user_sgpr_count 2
  .amdhsa_user_sgpr_kernarg_segment_ptr 1
  .amdhsa_system_sgpr_workgroup_id_x 1
  .amdhsa_float_denorm_mode_32 3
.end_amdhsa_kernel
"""

def gen(W=2, ld="", st="", vgpr_min=0, lds_min=0, spin=None, ts=False, noload=False, nostore=False):
    name = "standalone__grn__sampling_kernel"
    o = []
    e = o.append
    lds = max(64 if W > 1 else 0, lds_min)
    e(HEADER.rstrip())
    e(f"; @launch grid=(1024,1,1) block=({64*W},1,1) lds={lds}")
    e('.amdgcn_target "amdgcn-amd-amdhsa--gfx950"')
    e(".text")
    e(f".globl {name}")
    e(".p2align 8")
    e(f".type {name},@function")
    e(f"{name}:")
    NL = 32 // W
    H = 2 if W == 1 else 1
    e("  s_cmp_ge_u32 s2, 1024")
    e("  s_cbranch_scc1 L_end")
    if spin:
        e(f"  {spin[0]} s[40:41]")
    if ts:
        e("  s_memrealtime s[40:41]")
        e("  s_load_dwordx2 s[48:49], s[0:1], 40")
    e("  s_load_dwordx8 s[4:11], s[0:1], 0")
    e("  s_lshl_b32 s3, s2, 15")
    if W <= 2:
        e("  v_lshlrev_b32 v1, 4, v0")
        e("  v_mov_b32 v2, v1")
    elif W == 4:
        e("  v_and_b32 v2, 31, v0")
        e("  v_lshlrev_b32 v2, 4, v2")
        e("  v_lshrrev_b32 v3, 6, v0")
        e("  v_lshl_add_u32 v2, v3, 9, v2")
        e("  v_and_b32 v3, 32, v0")
        e("  v_lshl_add_u32 v1, v3, 6, v2")
    for k in range(1, 8):
        e(f"  s_movk_i32 s{28+k}, {k*4096}")
    e("  s_mov_b32 s14, 32768")
    e("  s_mov_b32 s15, 0x20000")
    e("  s_mov_b32 s18, 32768")
    e("  s_mov_b32 s19, 0x20000")
    e("  s_mov_b32 s22, 2048")
    e("  s_mov_b32 s23, 0x20000")
    e("  s_mov_b32 s26, 2048")
    e("  s_mov_b32 s27, 0x20000")
    e("  s_waitcnt lgkmcnt(0)")
    e("  s_add_u32 s12, s4, s3")
    e("  s_addc_u32 s13, s5, 0")
    e("  s_mov_b32 s20, s6")
    e("  s_mov_b32 s21, s7")
    e("  s_mov_b32 s24, s8")
    e("  s_mov_b32 s25, s9")
    D = 4
    G = D + NL * 8
    A = G + 8 * H
    Bb = A + 8 * H
    T = Bb + 8 * H
    nv = T + 8
    def addr(j):
        if W == 1:
            byte = j * 1024
        elif W == 2:
            byte = j * 2048
        elif W == 4:
            byte = j * 4096
        k, imm = divmod(byte, 4096)
        so = "0" if k == 0 else f"s{28+k}"
        return so, imm
    def memop(op, reg, vaddr, srd, so, imm, fl):
        s = f"  {op} v[{reg}:{reg+3}], {vaddr}, {srd}, {so} offen"
        if imm: s += f" offset:{imm}"
        if fl: s += " " + fl
        e(s)
    for j in range(NL):
        so, imm = addr(j)
        if noload: so, imm = "0", 0
        memop("buffer_load_dwordx4", D + 8 * j + 4, "v2" if noload else "v1", "s[20:23]" if noload else "s[12:15]", so, imm, ld)
    for h in range(H):
        memop("buffer_load_dwordx4", G + 8 * h + 4, "v2", "s[20:23]", "0", 1024 * h, "")
        memop("buffer_load_dwordx4", Bb + 8 * h + 4, "v2", "s[24:27]", "0", 1024 * h, "")
    e("  s_add_u32 s16, s10, s3")
    e("  s_addc_u32 s17, s11, 0")
    e("  s_mov_b32 s36, 0xffff0000")
    def unpack(base):
        for k in range(4):
            src = base + 4 + k
            e(f"  v_lshlrev_b32 v{base+2*k}, 16, v{src}")
            e(f"  v_and_b32 v{base+2*k+1}, s36, v{src}")
    nextra = 2 * H
    for j in range(NL):
        e(f"  s_waitcnt vmcnt({NL - 1 - j + nextra})")
        if ts and j == 0:
            e("  s_memrealtime s[52:53]")
        base = D + 8 * j
        unpack(base)
        h = j % H
        for k in range(4):
            r = base + 2 * k
            a = A + 8 * h + 2 * k
            if j < H:
                e(f"  v_pk_mul_f32 v[{a}:{a+1}], v[{r}:{r+1}], v[{r}:{r+1}]")
            else:
                e(f"  v_pk_fma_f32 v[{a}:{a+1}], v[{r}:{r+1}], v[{r}:{r+1}], v[{a}:{a+1}]")
    nA = 8 * H
    if W == 4:
        e("  s_nop 1")
        for i in range(4):
            e(f"  v_permlane32_swap_b32 v{A+i}, v{A+4+i}")
        for i in range(0, 4, 2):
            e(f"  v_pk_add_f32 v[{A+i}:{A+i+1}], v[{A+i}:{A+i+1}], v[{A+4+i}:{A+5+i}]")
        nA = 4
    for i in range(nA):
        e(f"  v_sqrt_f32 v{A+i}, v{A+i}")
    e("  s_waitcnt vmcnt(0)")
    if ts:
        e("  s_memrealtime s[42:43]")
    for h in range(H):
        unpack(G + 8 * h)
    if nA == 4:
        e(f"  v_pk_add_f32 v[{T}:{T+1}], v[{A}:{A+1}], v[{A+2}:{A+3}]")
    else:
        e(f"  v_pk_add_f32 v[{T}:{T+1}], v[{A}:{A+1}], v[{A+2}:{A+3}]")
        for i in range(4, nA, 2):
            e(f"  v_pk_add_f32 v[{T}:{T+1}], v[{T}:{T+1}], v[{A+i}:{A+i+1}]")
    e(f"  v_add_f32 v{T}, v{T}, v{T+1}")
    for dpp in ["quad_perm:[1,0,3,2] row_mask:0xf", "quad_perm:[2,3,0,1] row_mask:0xf", "row_half_mirror row_mask:0xf", "row_mirror row_mask:0xf",
                "row_bcast:15 row_mask:0xa", "row_bcast:31 row_mask:0xc"]:
        e("  s_nop 1")
        e(f"  v_add_f32_dpp v{T}, v{T}, v{T} {dpp} bank_mask:0xf")
    if W == 1:
        e("  s_nop 0")
        e(f"  v_readlane_b32 s37, v{T}, 63")
        for h in range(H):
            unpack(Bb + 8 * h)
        e(f"  v_mov_b32 v{T}, s37")
    else:
        e(f"  v_lshrrev_b32 v{T+1}, 4, v0")
        e(f"  v_and_b32 v{T+1}, 0xfc, v{T+1}")
        e("  s_mov_b32 exec_lo, 0")
        e("  s_mov_b32 exec_hi, 0x80000000")
        e(f"  ds_write_b32 v{T+1}, v{T}")
        e("  s_mov_b64 exec, -1")
        e(f"  v_mov_b32 v{T+1}, 0")
        for h in range(H):
            unpack(Bb + 8 * h)
        e("  s_waitcnt lgkmcnt(0)")
        e("  s_barrier")
        if W == 2:
            e(f"  ds_read_b64 v[{T+2}:{T+3}], v{T+1}")
            e("  s_waitcnt lgkmcnt(0)")
            e(f"  v_add_f32 v{T}, v{T+2}, v{T+3}")
        elif W == 4:
            e(f"  ds_read_b128 v[{T+4}:{T+7}], v{T+1}")
            e("  s_waitcnt lgkmcnt(0)")
            e(f"  v_pk_add_f32 v[{T+4}:{T+5}], v[{T+4}:{T+5}], v[{T+6}:{T+7}]")
            e(f"  v_add_f32 v{T}, v{T+4}, v{T+5}")
    e(f"  v_mov_b32 v{T+1}, 0x358637bd")
    e(f"  v_fmac_f32 v{T+1}, 0x3a800000, v{T}")
    e(f"  v_rcp_f32 v{T}, v{T+1}")
    if W == 4:
        for i in range(4):
            e(f"  v_mov_b32 v{A+4+i}, v{A+i}")
        e("  s_nop 1")
        for i in range(4):
            e(f"  v_permlane32_swap_b32 v{A+i}, v{A+4+i}")
    for i in range(0, 8 * H, 2):
        e(f"  v_pk_mul_f32 v[{A+i}:{A+i+1}], v[{A+i}:{A+i+1}], v[{G+i}:{G+i+1}]")
    e(f"  v_mov_b32 v{T+1}, v{T}")
    for i in range(0, 8 * H, 2):
        e(f"  v_pk_fma_f32 v[{A+i}:{A+i+1}], v[{A+i}:{A+i+1}], v[{T}:{T+1}], 1.0 op_sel_hi:[1,1,0]")
    for j in range(NL):
        base = D + 8 * j
        h = j % H
        for k in range(4):
            r = base + 2 * k
            a = A + 8 * h + 2 * k
            b = Bb + 8 * h + 2 * k
            e(f"  v_pk_fma_f32 v[{r}:{r+1}], v[{r}:{r+1}], v[{a}:{a+1}], v[{b}:{b+1}]")
        for k in range(4):
            r = base + 2 * k
            e(f"  v_cvt_pk_bf16_f32 v{base+k}, v{r}, v{r+1}")
        so, imm = addr(j)
        if not nostore or j == NL - 1:
            memop("buffer_store_dwordx4", base, "v1", "s[16:19]", so, imm, st)
    if ts:
        e("  s_memrealtime s[44:45]")
        e("  s_waitcnt vmcnt(0)")
        e("  s_memrealtime s[46:47]")
        e("  s_mov_b32 s50, 0x1000000")
        e("  s_mov_b32 s51, 0x20000")
        e("  s_getreg_b32 s54, hwreg(HW_REG_HW_ID)")
        e("  s_getreg_b32 s55, hwreg(HW_REG_XCC_ID)")
        e("  s_waitcnt lgkmcnt(0)")
        e("  v_mov_b32 v4, s40")
        e("  v_mov_b32 v5, s52")
        e("  v_mov_b32 v6, s42")
        e("  v_mov_b32 v7, s44")
        e("  v_mov_b32 v8, s46")
        e("  v_mov_b32 v9, s54")
        e("  v_mov_b32 v10, s55")
        e("  v_mov_b32 v11, s2")
        e("  v_lshrrev_b32 v0, 6, v0")
        e(f"  s_mul_i32 s3, s2, {W}")
        e("  v_add_u32 v0, s3, v0")
        e("  v_lshlrev_b32 v0, 5, v0")
        e("  s_mov_b64 exec, 1")
        e("  buffer_store_dwordx4 v[4:7], v0, s[48:51], 0 offen")
        e("  buffer_store_dwordx4 v[8:11], v0, s[48:51], 0 offen offset:16")
    if spin:
        e("  s_cmp_lg_u32 s2, 0")
        e("  s_cbranch_scc1 L_end")
        e("L_spin:")
        e("  s_sleep 1")
        e(f"  {spin[0]} s[42:43]")
        e("  s_waitcnt lgkmcnt(0)")
        e("  s_sub_u32 s42, s42, s40")
        e(f"  s_cmp_lt_u32 s42, {spin[1]}")
        e("  s_cbranch_scc1 L_spin")
    e("L_end:")
    e("  s_endpgm")
    nv = max(nv, vgpr_min)
    if nv > 256:
        raise SystemExit("too many vgprs %d" % nv)
    e(footer(name, nv, 56))
    return "\n".join(o)

if __name__ == "__main__":
    p = argparse.ArgumentParser()
    p.add_argument("-W", type=int, default=2)
    p.add_argument("--ld", default="")
    p.add_argument("--st", default="")
    p.add_argument("--vgpr", type=int, default=0)
    p.add_argument("--lds", type=int, default=0)
    p.add_argument("--spin", default="")
    p.add_argument("--ts", action="store_true")
    p.add_argument("--noload", action="store_true")
    p.add_argument("--nostore", action="store_true")
    p.add_argument("-o", default="/dev/stdout")
    a = p.parse_args()
    open(a.o, "w").write(gen(a.W, a.ld, a.st, a.vgpr, a.lds, a.spin.split(",") if a.spin else None, a.ts, a.noload, a.nostore))
```

```python
from gen1 import gen, footer
def mk():
    main = gen(2, "nt", "sc0 sc1")
    l1 = "; @launch kernel=probe_kernel grid=(1,1,1) block=(64,1,1) lds=0"
    l2 = "; @launch kernel=standalone__grn__sampling_kernel grid=(1024,1,1) block=(128,1,1) lds=64"
    main = main.replace("; @launch grid=(1024,1,1) block=(128,1,1) lds=64", l2 + "\n" + l1)
    o = []; e = o.append
    e("""
.text
.globl probe_kernel
.p2align 8
.type probe_kernel,@function
probe_kernel:
  s_cmp_lg_u32 s2, 0
  s_cbranch_scc1 P_end
  s_memrealtime s[40:41]
  s_load_dwordx2 s[24:25], s[0:1], 0
  s_load_dwordx2 s[26:27], s[0:1], 24
  s_load_dwordx2 s[32:33], s[0:1], 32
  s_mov_b32 s34, 256
  s_mov_b32 s35, 0x20000
  s_mov_b32 s6, 0x2000000
  s_mov_b32 s7, 0x20000
  v_mov_b32 v1, 0
  s_mov_b64 exec, 1
  s_waitcnt lgkmcnt(0)
""")
    for bi, (lo, hi) in enumerate([(24, 25), (26, 27)]):
        e(f"""
  s_mov_b32 s4, s{lo}
  s_mov_b32 s5, s{hi}
  s_mov_b32 s12, -1
  s_mov_b32 s13, -1
  s_mov_b32 s14, 0          ; sample
P_samp{bi}:
  s_mul_i32 s8, s14, 8192+256
  s_add_u32 s8, s8, 0x10000
  s_memtime s[20:21]
  s_waitcnt lgkmcnt(0)
  buffer_load_dword v2, v1, s[4:7], s8 offen nt
  s_waitcnt vmcnt(0)
  s_memtime s[22:23]
  s_waitcnt lgkmcnt(0)
  s_sub_u32 s15, s22, s20
  s_and_b32 s9, s14, 1
  s_cmp_eq_u32 s9, 0
  s_cbranch_scc0 P_odd{bi}
  s_min_u32 s12, s12, s15
  s_branch P_nx{bi}
P_odd{bi}:
  s_min_u32 s13, s13, s15
P_nx{bi}:
  s_add_u32 s14, s14, 1
  s_cmp_lt_u32 s14, 16
  s_cbranch_scc1 P_samp{bi}
  s_cmp_gt_u32 s12, s13
  s_cselect_b32 s{36+bi}, 1, 0
""")
    e("""
  s_xor_b32 s9, s36, s37
  v_mov_b32 v4, s36
  v_mov_b32 v5, s37
  v_mov_b32 v6, s24
  v_mov_b32 v7, s26
  buffer_store_dwordx4 v[4:7], v1, s[32:35], 0 offen
  s_mul_i32 s9, s9, 5000
  s_add_u32 s9, s9, 2500
P_spin:
  s_sleep 1
  s_memrealtime s[42:43]
  s_waitcnt lgkmcnt(0)
  s_sub_u32 s42, s42, s40
  s_cmp_lt_u32 s42, s9
  s_cbranch_scc1 P_spin
  s_waitcnt vmcnt(0)
P_end:
  s_endpgm
""")
    return main + "\n".join(o) + footer("probe_kernel", 8, 48)
open("parprobe3.s", "w").write(mk())
```

```python
from gen1 import HEADER

def gen(sel="xcc", vg=0, dbg=0, lpat="11111111", gbfl="", compact=0, x8=0, leak=None, lpar=1, holdpar=None, hmid=None):
    name = "standalone__grn__sampling_kernel"
    o = []; e = o.append
    NL = 8
    DB = 4; G = DB + NL * 8; Bb = G + 8; A = Bb + 8; nv = max(A + 8, vg); T = 2
    e(HEADER.rstrip())
    e("; @launch grid=(1024,1,1) block=(256,1,1) lds=16")
    e(""";
; v68..v75 = g, v76..v83 = b, v84..v91 = column sums / gx / g*nx+1, v2:v3 = temporaries""")
    e('.amdgcn_target "amdgcn-amd-amdhsa--gfx950"')
    e(".text"); e(f".globl {name}"); e(".p2align 8"); e(f".type {name},@function"); e(f"{name}:")
    if x8:
        e("  s_load_dwordx2 s[4:5], s[0:1], 0            ; x   -> SRD s[4:7]")
        e("  s_load_dwordx4 s[28:31], s[0:1], 8          ; g, b")
        e("  s_load_dwordx2 s[16:17], s[0:1], 24")
    else:
        e("  s_load_dwordx2 s[4:5], s[0:1], 0            ; x   -> SRD s[4:7]")
        e("  s_load_dwordx2 s[8:9], s[0:1], 8            ; g   -> SRD s[8:11]")
        e("  s_load_dwordx2 s[12:13], s[0:1], 16         ; b   -> SRD s[12:15]")
        e("  s_load_dwordx2 s[16:17], s[0:1], 24")
    e("  s_cmpk_ge_u32 s2, 1024")
    e("  s_cbranch_scc1 L_end")
    e("  s_setprio 3")
    e("  s_lshl_b32 s3, s2, 15")
    e("  v_and_b32 v2, 31, v0")
    e("  v_lshrrev_b32 v3, 6, v0")
    e("  v_lshlrev_b32 v2, 4, v2")
    e("  v_bfe_u32 v1, v0, 5, 1")
    e("  v_lshl_add_u32 v2, v3, 9, v2")
    e("  v_lshl_add_u32 v1, v1, 11, s3")
    e("  v_add_u32 v1, v1, v2")
    if compact:
        e("  s_lshl_b32 s6, 1, 25")
        e("  s_lshl_b32 s7, 1, 17                        ; 0x20000")
    else:
        e("  s_mov_b32 s6, 0x2000000")
        e("  s_mov_b32 s7, 0x20000")
    if compact in (0, 3):
        for j in range(1, NL):
            e(f"  s_movk_i32 s{20+j}, {j*4096}" + ("                      ; row-pair offsets" if j == 1 else ""))
    so = ["0"] + [f"s{20+j}" for j in range(1, NL)]
    def gbs():
        if not x8:
            e("  s_movk_i32 s10, 2048")
            e("  s_mov_b32 s11, s7")
            e("  s_movk_i32 s14, 2048")
            e("  s_mov_b32 s15, s7")
    def gbl():
        if x8:
            e(f"  global_load_dwordx4 v[{G+4}:{G+7}], v2, s[28:29]")
            e(f"  global_load_dwordx4 v[{Bb+4}:{Bb+7}], v2, s[30:31]")
        else:
            e(f"  buffer_load_dwordx4 v[{G+4}:{G+7}], v2, s[8:11], 0 offen {gbfl}".rstrip())
            e(f"  buffer_load_dwordx4 v[{Bb+4}:{Bb+7}], v2, s[12:15], 0 offen {gbfl}".rstrip())
    gblast = compact == 2
    if not gblast: gbs()
    if leak is not None or holdpar is not None:
        e("  s_getreg_b32 s29, hwreg(HW_REG_XCC_ID)")
    if leak is not None:
        e("  s_bitcmp1_b32 s29, 0")
        e(f"  s_cbranch_scc{lpar} L_leak")
    e("  s_waitcnt lgkmcnt(0)")
    if not gblast: gbl()
    for j in range(NL):
        if compact in (1, 2) and j: e(f"  s_movk_i32 s{20+j}, {j*4096}")
        e(f"  buffer_load_dwordx4 v[{DB+8*j+4}:{DB+8*j+7}], v1, s[4:7], {so[j]} offen" + (" nt" if str(lpat).zfill(8)[j] == "1" else ""))
    if gblast:
        gbs(); gbl()
    if leak is not None:
        e("  s_branch L_ldone")
        e("L_leak:")
        e("  s_waitcnt lgkmcnt(0)")
        gbl()
        for j in range(NL):
            if j == leak: e("  s_nop 0")
            e(f"  buffer_load_dwordx4 v[{DB+8*j+4}:{DB+8*j+7}], v1, s[4:7], {so[j]} offen nt")
        e("L_ldone:")
    e("  s_setprio 0")
    e("  s_mov_b32 s18, s6")
    e("  s_mov_b32 s19, s7")
    e("  s_mov_b32 s20, 0xffff0000")
    if sel == "xcc":
        assert not x8
        e("  s_getreg_b32 s28, hwreg(HW_REG_XCC_ID)")
    e("  v_lshlrev_b32 v0, 2, v3")
    def unpack(base):
        for q in range(4):
            src = base + 4 + q
            e(f"  v_lshlrev_b32 v{base+2*q}, 16, v{src}")
            e(f"  v_and_b32 v{base+2*q+1}, s20, v{src}")
    if not gblast:
        e(f"  s_waitcnt vmcnt({NL})")
        unpack(G); unpack(Bb)
    for j in range(NL):
        e(f"  s_waitcnt vmcnt({NL-1-j+(2 if gblast else 0)})")
        base = DB + 8 * j
        unpack(base)
        for q in range(4):
            r = base + 2 * q; a = A + 2 * q
            if j == 0: e(f"  v_pk_mul_f32 v[{a}:{a+1}], v[{r}:{r+1}], v[{r}:{r+1}]")
            else: e(f"  v_pk_fma_f32 v[{a}:{a+1}], v[{r}:{r+1}], v[{r}:{r+1}], v[{a}:{a+1}]")
    if gblast:
        e("  s_waitcnt vmcnt(0)")
        unpack(G); unpack(Bb)
    e("  s_nop 1")
    for i in range(4): e(f"  v_permlane32_swap_b32 v{A+i}, v{A+4+i}")
    for i in range(0, 4, 2): e(f"  v_pk_add_f32 v[{A+i}:{A+i+1}], v[{A+i}:{A+i+1}], v[{A+4+i}:{A+5+i}]")
    for i in range(4): e(f"  v_sqrt_f32 v{A+i}, v{A+i}" + ("                          ; gx" if i == 0 else ""))
    e("  s_nop 0")
    e(f"  v_pk_add_f32 v[{T}:{T+1}], v[{A}:{A+1}], v[{A+2}:{A+3}]")
    e(f"  v_add_f32 v{T}, v{T}, v{T+1}")
    fill = [[f"  v_mov_b32 v{A+4}, v{A}", f"  v_mov_b32 v{A+5}, v{A+1}"], [f"  v_mov_b32 v{A+6}, v{A+2}", f"  v_mov_b32 v{A+7}, v{A+3}"],
            ["  s_nop 1"],
            [f"  v_permlane32_swap_b32 v{A}, v{A+4}", f"  v_permlane32_swap_b32 v{A+1}, v{A+5}"],
            [f"  v_permlane32_swap_b32 v{A+2}, v{A+6}", f"  v_permlane32_swap_b32 v{A+3}, v{A+7}"], ["  s_nop 1"]]
    for f, dpp in zip(fill, ["quad_perm:[1,0,3,2] row_mask:0xf", "quad_perm:[2,3,0,1] row_mask:0xf", "row_half_mirror row_mask:0xf", "row_mirror row_mask:0xf",
                "row_bcast:15 row_mask:0xa", "row_bcast:31 row_mask:0xc"]):
        for l in f: e(l)
        e(f"  v_add_f32_dpp v{T}, v{T}, v{T} {dpp} bank_mask:0xf")
    e("  s_mov_b32 exec_lo, 0")
    e("  s_brev_b32 exec_hi, 1")
    e(f"  ds_write_b32 v0, v{T}")
    e("  s_mov_b64 exec, -1")
    for i in range(0, 8, 2): e(f"  v_pk_mul_f32 v[{A+i}:{A+i+1}], v[{A+i}:{A+i+1}], v[{G+i}:{G+i+1}]" + ("  ; g*gx" if i == 0 else ""))
    e(f"  v_mov_b32 v{T}, 0")
    e(f"  v_mov_b32 v{T+1}, 0x358637bd                    ; 1e-6")
    e("  s_waitcnt lgkmcnt(0)")
    e("  s_barrier")
    e(f"  ds_read_b128 v[{G}:{G+3}], v{T}")
    e("  s_waitcnt lgkmcnt(0)")
    e(f"  v_pk_add_f32 v[{G}:{G+1}], v[{G}:{G+1}], v[{G+2}:{G+3}]")
    e(f"  v_add_f32 v{T}, v{G}, v{G+1}")
    e(f"  v_fmac_f32 v{T+1}, 0x3a800000, v{T}               ; total/1024 + 1e-6")
    e(f"  v_rcp_f32 v{T}, v{T+1}")
    e("  s_nop 0")
    for i in range(0, 8, 2):
        e(f"  v_pk_fma_f32 v[{A+i}:{A+i+1}], v[{A+i}:{A+i+1}], v[{T}:{T+1}], 1.0 op_sel_hi:[1,0,0]" + ("  ; g*nx + 1" if i == 0 else ""))
    for j in range(NL):
        base = DB + 8 * j
        for q in range(4):
            r = base + 2 * q; a = A + 2 * q; b = Bb + 2 * q
            e(f"  v_pk_fma_f32 v[{r}:{r+1}], v[{r}:{r+1}], v[{a}:{a+1}], v[{b}:{b+1}]")
        for q in range(4):
            r = base + 2 * q
            e(f"  v_cvt_pk_bf16_f32 v{base+q}, v{r}, v{r+1}")
    if holdpar is not None:
        e("  s_bitcmp1_b32 s29, 0")
        e(f"  s_cbranch_scc{1-holdpar} L_nohold")
        e(f"  s_cmpk_ge_u32 s2, {hmid or 768}")
        e("  s_cbranch_scc1 L_nohold")
        e("  v_mov_b32 v2, 0")
        e("  buffer_load_dword v3, v2, s[8:11], 0 offen")
        e("  s_waitcnt vmcnt(0)")
        e("L_nohold:")
    def stores(fl):
        for j in range(NL):
            base = DB + 8 * j
            e(f"  buffer_store_dwordx4 v[{base}:{base+3}], v1, s[16:19], {so[j]} offen {fl}")
    if sel == "none":
        stores("sc1")
    else:
        e(f"  s_bitcmp1_b32 {'s28' if sel == 'xcc' else 's2'}, {0 if sel == 'xcc' else sel}")
        e("  s_cbranch_scc1 L_keep")
        stores("sc1 nt")
        e("  s_endpgm")
        e("L_keep:")
        stores("sc1")
    e("L_end:")
    e("  s_endpgm")
    acc = (nv + 3) // 4 * 4
    e(f""".section .rodata,"a"
.p2align 6
.amdhsa_kernel {name}
  .amdhsa_next_free_vgpr {nv}
  .amdhsa_next_free_sgpr 32
  .amdhsa_accum_offset {acc}
  .amdhsa_group_segment_fixed_size 0
  .amdhsa_kernarg_size 48
  .amdhsa_user_sgpr_count 2
  .amdhsa_user_sgpr_kernarg_segment_ptr 1
  .amdhsa_system_sgpr_workgroup_id_x 1
  .amdhsa_float_denorm_mode_32 3
.end_amdhsa_kernel
""")
    return "\n".join(o)

if __name__ == "__main__":
    print(gen())
```
